```python
import torch

def _softmax(x, axis=-1):
    return torch.softmax(x, dim=axis)
def _gelu(x):
    return torch.nn.functional.gelu(x, approximate="tanh")
def _silu(x):
    return torch.nn.functional.silu(x)
def _sigmoid(x):
    return torch.sigmoid(x)
def _layernorm(x, axis=-1, eps=1e-5):
    m = x.mean(dim=axis, keepdim=True)
    v = x.var(dim=axis, keepdim=True, unbiased=False)
    return (x - m) / torch.sqrt(v + eps)
def _scatter_add(tgt, idx, src, axis=0):
    return tgt.clone().index_add_(axis, idx, src)
def _segment_sum(src, seg, n):
    out = torch.zeros((n,) + src.shape[1:], dtype=src.dtype)
    return out.index_add_(0, seg, src)
def _pad(x, pw):
    flat = tuple(v for pair in reversed(pw) for v in pair)
    return torch.nn.functional.pad(x, flat)

kernel_name = 'interleave_layers__linear_kernel_hedgehog__mha_block__prompt'

def setup_inputs():

    _w = (lambda a: (lambda t: t.to(torch.bfloat16) if t.is_floating_point() else t)(torch.as_tensor(a)))
    def _A_setup():
        B, S, D, H = 1, 2048, 1024, 32
        Dh = D // H
        return {
            "x": _w((lambda *s: torch.randn(*s, dtype=torch.bfloat16) * 0.05)(B, S, D)),
            "wqkv": _w((lambda *s: torch.randn(*s, dtype=torch.bfloat16) * 0.2)(D, 3 * D)),
            "w_phi": _w((lambda *s: torch.randn(*s, dtype=torch.bfloat16) * 0.2)(H, Dh, Dh) * (Dh ** -0.5)),
            "wo": _w((lambda *s: torch.randn(*s, dtype=torch.bfloat16) * 0.05)(D, D)),
        }
    _A_in = _A_setup()

    def _B_setup():
        B, S, D, H = 1, 2048, 1024, 32
        return {
            "x": _w((lambda *s: torch.randn(*s, dtype=torch.bfloat16) * 0.05)(B, S, D)),
            "wqkv": _w((lambda *s: torch.randn(*s, dtype=torch.bfloat16) * 0.1)(D, 3 * D)),
            "wo": _w((lambda *s: torch.randn(*s, dtype=torch.bfloat16) * 0.05)(D, D)),
        }
    _B_in = _B_setup()

    return {
        "A_x": _A_in["x"],
        "A_wqkv": _A_in["wqkv"],
        "A_w_phi": _A_in["w_phi"],
        "A_wo": _A_in["wo"],
        "B_x": _B_in["x"],
        "B_wqkv": _B_in["wqkv"],
        "B_wo": _B_in["wo"],
    }

def reference(A_x, A_wqkv, A_w_phi, A_wo, B_x, B_wqkv, B_wo):
    def _A_ref(x, wqkv, w_phi, wo):
        B, S, D = x.shape
        H = 32; Dh = D // H
        qkv = (lambda x, *d: x.permute(*d))((x @ wqkv).reshape(B, S, 3, H, Dh), 2, 0, 3, 1, 4)
        q, k, v = qkv[0], qkv[1], qkv[2]
        pq = torch.einsum("bhsd,hdf->bhsf", q, w_phi)
        pk = torch.einsum("bhsd,hdf->bhsf", k, w_phi)
        phi_q = torch.concatenate([_softmax(pq, axis=-1), _softmax(-pq, axis=-1)], axis=-1)
        phi_k = torch.concatenate([_softmax(pk, axis=-1), _softmax(-pk, axis=-1)], axis=-1)
        kv = torch.einsum("bhsf,bhsd->bhfd", phi_k, v)
        z  = torch.einsum("bhsf->bhf", phi_k)
        num = torch.einsum("bhqf,bhfd->bhqd", phi_q, kv)
        den = torch.einsum("bhqf,bhf->bhq", phi_q, z)[..., None] + 1e-6
        o = num / den
        return (lambda x, *d: x.permute(*d))(o, 0, 2, 1, 3).reshape(B, S, D) @ wo

    def _B_ref(x, wqkv, wo):
        B, S, D = x.shape
        H = 32
        Dh = D // H
        qkv = (lambda x, *d: x.permute(*d))((x @ wqkv).reshape(B, S, 3, H, Dh), 2, 0, 3, 1, 4)
        q, k, v = qkv[0], qkv[1], qkv[2]
        scores = torch.einsum("bhqd,bhkd->bhqk", q, k) * (Dh ** -0.5)
        p = _softmax(scores, axis=-1)
        o = torch.einsum("bhqk,bhkd->bhqd", p, v)
        return (lambda x, *d: x.permute(*d))(o, 0, 2, 1, 3).reshape(B, S, D) @ wo

    x = A_x
    x = x + _A_ref(_layernorm(x, axis=-1), A_wqkv, A_w_phi, A_wo)
    x = x + _B_ref(_layernorm(x, axis=-1), B_wqkv, B_wo)
    x = x + _A_ref(_layernorm(x, axis=-1), A_wqkv, A_w_phi, A_wo)
    x = x + _B_ref(_layernorm(x, axis=-1), B_wqkv, B_wo)
    return x
```

```python
from dsl import *

KA_AX, KA_AWQKV, KA_AWPHI, KA_AWO, KA_BX, KA_BWQKV, KA_BWO, KA_OUT, KA_DBG, KA_WS = [8*i for i in range(10)]

MB = 1 << 20
WS_XF   = 0
WS_OF   = 4*MB
WS_KV   = 8*MB
WS_KVP  = 16*MB
WS_ZP   = 18*MB
WS_ST   = 19*MB
WS_CS   = 20*MB
WS_FLAG = 21*MB
SZ_XF = 4*MB; SZ_OF = 4*MB; SZ_KV = 8*MB; SZ_KVP = 2*MB; SZ_ZP = 128*1024; SZ_ST = 256*1024; SZ_CS = 2*3072*4; SZ_FLAG = 4*16*128

def load_ptr(a, s, ka):
    a(f"s_load_dwordx2 s[{s}:{s+1}], s[0:1], {ka}")

def make_srd(a, srd, s_ptr, size, off=0):
    if off:
        a(f"s_add_u32 s{srd}, s{s_ptr}, {off}\ns_addc_u32 s{srd+1}, s{s_ptr+1}, 0")
    else:
        a(f"s_mov_b32 s{srd}, s{s_ptr}\ns_mov_b32 s{srd+1}, s{s_ptr+1}")
    a(f"s_mov_b32 s{srd+2}, {size}\ns_mov_b32 s{srd+3}, 0x20000")

def srd(n): return f"s[{n}:{n+3}]"

def kernel_text(name, a, vgprs, sgprs=102):
    lines, npad = fix_hazards(a.L)
    vg = (vgprs + 7)//8*8
    txt = f".text\n.globl {name}\n.p2align 8\n.type {name},@function\n{name}:\n" + "\n".join(lines) + "\n"
    txt += kernel_descriptor(name, vg, sgprs, vg)
    return txt

def halfsum(a, r, t, op="v_add_f32"):
    a(f"v_mov_b32 v{t}, v{r}\nv_permlane32_swap_b32 v{t}, v{r}\n{op} v{r}, v{r}, v{t}")
```

```python
import re


class Regs:
    def __init__(self, first, last):
        self.first, self.last = first, last
        self.used = set()
        self.high = first - 1

    def alloc(self, n=1, align=None):
        if align is None:
            align = 1 if n == 1 else (2 if n < 4 else 4)
        r = self.first
        while True:
            r = (r + align - 1) // align * align
            if r + n - 1 > self.last:
                raise RuntimeError("out of registers (need %d)" % n)
            if all((r + i) not in self.used for i in range(n)):
                for i in range(n):
                    self.used.add(r + i)
                self.high = max(self.high, r + n - 1)
                return r
            r += 1

    def free(self, r, n=1):
        for i in range(n):
            self.used.discard(r + i)

    def reserve(self, r, n=1):
        for i in range(n):
            assert (r + i) not in self.used, r + i
            self.used.add(r + i)
        self.high = max(self.high, r + n - 1)


def vr(r, n=1):
    return "v%d" % r if n == 1 else "v[%d:%d]" % (r, r + n - 1)


def sr(r, n=1):
    return "s%d" % r if n == 1 else "s[%d:%d]" % (r, r + n - 1)


class Asm:
    def __init__(self):
        self.L = []

    def __call__(self, s):
        for line in s.split("\n"):
            line = line.strip()
            if line:
                self.L.append(line)

    def label(self, name):
        self.L.append(name + ":")

    def c(self, text):
        self.L.append("; " + text)

    def extend(self, other):
        self.L.extend(other.L if isinstance(other, Asm) else other)


_REG = re.compile(r"^(-?\|?)(?:abs\()?([vsa])(?:(\d+)|\[(\d+):(\d+)\])\)?\|?$")
TRANS = ("v_exp_f32", "v_log_f32", "v_rcp_f32", "v_rsq_f32", "v_sqrt_f32", "v_sin_f32", "v_cos_f32",
         "v_exp_f16", "v_rcp_f16", "v_rcp_iflag_f32")


def _opnd_regs(tok):
    tok = tok.strip()
    if tok in ("vcc",):
        return [("s", "vcc")]
    if tok in ("vcc_lo", "vcc_hi"):
        return [("s", "vcc")]
    if tok == "exec":
        return [("s", "exec")]
    if tok == "m0":
        return [("s", "m0")]
    m = _REG.match(tok)
    if not m:
        return []
    k = m.group(2)
    if m.group(3) is not None:
        return [(k, int(m.group(3)))]
    return [(k, i) for i in range(int(m.group(4)), int(m.group(5)) + 1)]


class Ins:
    __slots__ = ("text", "op", "dst", "src", "kind", "passes", "srcc", "srcab", "first", "n", "nopn", "wide",
                 "lds", "dpp", "raw_ops")

    def __init__(self, text):
        self.text = text
        t = text.split(";")[0].strip()
        parts = t.split(None, 1)
        self.op = op = parts[0]
        rest = parts[1] if len(parts) > 1 else ""
        ops = [o.strip() for o in rest.split(",")] if rest else []
        mods = ""
        if ops:
            sp = ops[-1].split(None, 1)
            if len(sp) > 1:
                ops[-1] = sp[0]
                mods = sp[1]
            elif sp and not _opnd_regs(sp[0]) and op.startswith(("ds_", "buffer_", "global_")) and sp[0] in ("lds",):
                mods = sp[0]
        self.raw_ops = ops
        R = [_opnd_regs(o) for o in ops]
        self.dst, self.src = [], []
        self.kind = "other"
        self.passes = 0
        self.srcc, self.srcab = [], []
        self.nopn = 0
        self.wide = False
        self.lds = " lds" in (" " + mods)
        self.dpp = "row_" in mods or "quad_perm" in mods or "_dpp" in op or "wave_" in mods
        flat = lambda x: [r for l in x for r in l]
        if op == "s_nop":
            self.kind = "nop"
            self.nopn = int(ops[0], 0)
        elif op.startswith("v_mfma"):
            self.kind = "mfma"
            self.passes = 8 if "32x32" in op else 4
            self.dst = R[0]
            self.srcab = R[1] + R[2]
            self.srcc = R[3] if len(R) > 3 else []
            self.src = self.srcab + self.srcc
        elif op.startswith("v_"):
            self.kind = "valu"
            if op.startswith("v_cmp"):
                self.dst = R[0]
                self.src = flat(R[1:])
            elif op.startswith(("v_permlane32_swap", "v_permlane16_swap")):
                self.kind = "permlane"
                self.dst = R[0] + R[1]
                self.src = R[0] + R[1]
            elif op.startswith(("v_readfirstlane", "v_readlane")):
                self.kind = "readlane"
                self.dst = R[0]
                self.src = flat(R[1:])
            elif op.startswith(("v_add_co", "v_sub_co", "v_addc_co", "v_subb_co")):
                self.dst = R[0] + R[1]
                self.src = flat(R[2:])
            else:
                self.dst = R[0]
                self.src = flat(R[1:])
                if op.startswith(("v_fmac", "v_dot2c", "v_pk_fmac", "v_writelane")):
                    self.src = self.src + R[0]
                if op.startswith("v_cndmask") and len(ops) == 3:
                    self.src = self.src + [("s", "vcc")]
                if op.startswith("v_dot"):
                    self.kind = "dot"
                if any(op.startswith(x) for x in TRANS):
                    self.kind = "trans"
        elif op.startswith("ds_"):
            self.kind = "ds"
            if op.startswith(("ds_read", "ds_bpermute", "ds_permute", "ds_swizzle")) or "_rtn" in op:
                self.dst = R[0]
                self.src = flat(R[1:])
            else:
                self.src = flat(R)
        elif op.startswith(("buffer_", "global_")):
            self.kind = "vmem"
            if op in ("buffer_inv", "buffer_wbl2"):
                pass
            elif "load" in op:
                if self.lds or "load_lds" in op:
                    self.lds = True
                    self.src = flat(R)
                else:
                    self.dst = R[0]
                    self.src = flat(R[1:])
            elif "atomic" in op and "sc0" in mods:
                self.dst = R[0]
                self.src = flat(R)
            else:
                self.src = flat(R)
                if "store" in op and ("x4" in op or "x3" in op):
                    self.wide = True
        elif op.startswith("s_"):
            self.kind = "salu"
            if op.startswith(("s_cmp", "s_bitcmp", "s_waitcnt", "s_barrier", "s_branch", "s_cbranch", "s_endpgm",
                              "s_sleep", "s_setprio", "s_setreg")):
                self.src = flat(R)
            else:
                self.dst = R[0] if R else []
                self.src = flat(R[1:])
                if op.startswith(("s_and_saveexec", "s_or_saveexec", "s_andn2_saveexec")):
                    self.dst = self.dst + [("s", "exec")]


def _isvalu(i):
    return i.kind in ("valu", "trans", "dot", "permlane", "readlane")


class HState:
    def __init__(self):
        self.ev = {}

    def copy(self):
        h = HState()
        h.ev = dict(self.ev)
        return h

    def tick(self, n):
        dead = []
        for k, v in self.ev.items():
            age = v[0] + n
            if age > 24:
                dead.append(k)
            else:
                self.ev[k] = (age,) + v[1:]
        for k in dead:
            del self.ev[k]

    def merge(self, o):
        for k, v in o.ev.items():
            if k not in self.ev or v[0] < self.ev[k][0]:
                self.ev[k] = v


def _need(ins, st):
    need = 0

    def req(tag, reg, n):
        nonlocal need
        e = st.ev.get((tag, reg))
        if e is not None and e[0] < n:
            need = max(need, n - e[0])
        return e

    v = _isvalu(ins)
    for r in ins.src:
        if r[0] in "va":
            if ins.kind == "mfma":
                req("valu", r, 2)
                req("dot", r, 3)
            if ins.kind == "permlane" or ins.dpp:
                req("valu", r, 2)
            if ins.kind == "readlane":
                req("valu", r, 1)
            if v and ins.kind != "trans":
                req("trans", r, 1)
            if ins.kind in ("ds", "vmem"):
                req("trans", r, 1)
            e = st.ev.get(("dot", r))
            if e is not None and ins.kind != "mfma":
                same_acc = ins.kind == "dot" and ins.op == e[1] and r in ins.dst and \
                    ins.src.count(r) == 1
                if not same_acc:
                    req("dot", r, 3)
            e = st.ev.get(("mfma", r))
            if e is not None:
                p, first, n = e[1], e[2], e[3]
                if ins.kind == "mfma":
                    if r in ins.srcab:
                        req("mfma", r, 8 if p == 4 else 12)
                    if r in ins.srcc:
                        exact = ins.srcc[0] == first and len(ins.srcc) == n and ins.passes == p
                        if not exact:
                            req("mfma", r, 6 if p == 4 else 10)
                else:
                    req("mfma", r, 8 if p == 4 else 12)
        else:
            if ins.kind == "vmem":
                req("vsgpr", r, 5)
            elif v or ins.kind == "mfma":
                if ins.kind == "readlane":
                    req("vsgpr", r, 4)
                req("vsgpr", r, 2)
            elif ins.kind == "salu":
                req("vsgpr", r, 1)
    if (ins.kind == "vmem" and ins.lds) or "addtid" in ins.op:
        req("m0", ("s", "m0"), 1)
    for r in ins.dst:
        if r[0] in "va":
            e = st.ev.get(("mfma", r))
            if e is not None:
                p, first, n = e[1], e[2], e[3]
                if ins.kind == "mfma":
                    exact = ins.dst[0] == first and len(ins.dst) == n and ins.passes == p and \
                        bool(ins.srcc) and ins.srcc[0] == first
                    if not exact:
                        req("mfma", r, 6 if p == 4 else 10)
                else:
                    req("mfma", r, 8 if p == 4 else 12)
            e = st.ev.get(("srcc", r))
            if e is not None and v:
                req("srcc", r, 3 if e[1] == 4 else 7)
            if v:
                req("wide", r, 2)
            elif ins.kind != "mfma":
                req("wide", r, 1)
            e = st.ev.get(("dot", r))
            if e is not None and not (ins.kind == "dot" and ins.op == e[1]):
                req("dot", r, 3)
    return need


def _apply(ins, st):
    n = ins.nopn + 1 if ins.kind == "nop" else 1
    st.tick(n)
    v = _isvalu(ins)
    for r in ins.dst:
        for tag in ("valu", "trans", "mfma", "dot"):
            st.ev.pop((tag, r), None)
        if r[0] in "va":
            if ins.kind == "mfma":
                st.ev[("mfma", r)] = (0, ins.passes, ins.dst[0], len(ins.dst))
            elif v:
                st.ev[("valu", r)] = (0,)
                if ins.kind == "trans":
                    st.ev[("trans", r)] = (0,)
                if ins.kind == "dot":
                    st.ev[("dot", r)] = (0, ins.op)
        else:
            if v:
                st.ev[("vsgpr", r)] = (0,)
            else:
                st.ev.pop(("vsgpr", r), None)
            if r == ("s", "m0"):
                st.ev[("m0", r)] = (0,)
    if ins.kind == "mfma":
        for r in ins.srcc:
            if r not in ins.dst:
                st.ev[("srcc", r)] = (0, ins.passes)
    if ins.wide:
        for r in ins.src:
            if r[0] in "va":
                st.ev[("wide", r)] = (0,)


def fix_hazards(lines, verbose=False):
    items = []
    for t in lines:
        s = t.strip()
        if not s or s.startswith(";") or s.startswith("."):
            items.append(("raw", t))
        elif s.endswith(":"):
            items.append(("label", s[:-1]))
        else:
            items.append(("ins", Ins(s)))
    labels = {it[1]: i for i, it in enumerate(items) if it[0] == "label"}
    pads = {}
    for _round in range(6):
        changed = False
        incoming = {}
        st = HState()
        dead = False
        back = []
        for i, (k, it) in enumerate(items):
            if k == "label":
                if it in incoming:
                    if dead:
                        st = incoming[it].copy()
                    else:
                        st.merge(incoming[it])
                dead = False
                continue
            if k != "ins":
                continue
            if pads.get(i):
                st.tick(pads[i])
            nd = _need(it, st)
            if nd:
                pads[i] = pads.get(i, 0) + nd
                st.tick(nd)
                changed = True
            _apply(it, st)
            if it.op.startswith(("s_branch", "s_cbranch")):
                tgt = it.raw_ops[0]
                if tgt in labels:
                    if labels[tgt] > i:
                        if tgt in incoming:
                            incoming[tgt].merge(st)
                        else:
                            incoming[tgt] = st.copy()
                    else:
                        back.append((i, tgt, st.copy()))
                if it.op == "s_branch":
                    dead = True
                    st = HState()
            if it.op == "s_endpgm":
                dead = True
                st = HState()
        for (bi, tgt, bst) in back:
            s2 = bst.copy()
            j = labels[tgt] + 1
            steps = 0
            while j < len(items) and steps < 30:
                k, it = items[j]
                if k == "ins":
                    if pads.get(j):
                        s2.tick(pads[j])
                    nd = _need(it, s2)
                    if nd:
                        pads[j] = pads.get(j, 0) + nd
                        s2.tick(nd)
                        changed = True
                        if verbose:
                            print("back-edge pad %d before: %s" % (nd, it.text))
                    _apply(it, s2)
                    steps += 1
                    if it.op == "s_branch" or it.op == "s_endpgm":
                        break
                j += 1
        if not changed:
            break
    out = []
    npad = 0
    for i, (k, it) in enumerate(items):
        p = pads.get(i, 0)
        if p:
            npad += 1
            if verbose:
                print("pad %d before %s" % (p, it.text))
            while p > 0:
                q = min(p, 16)
                out.append("s_nop %d" % (q - 1))
                p -= q
        if k == "raw":
            out.append(it)
        elif k == "label":
            out.append(it + ":")
        else:
            out.append(it.text)
    return out, npad


def kernel_descriptor(name, vgpr, sgpr=102, accum=None):
    if accum is None:
        accum = (vgpr + 3) // 4 * 4
    return """.section .rodata,"a"
.p2align 6
.amdhsa_kernel %s
  .amdhsa_next_free_vgpr %d
  .amdhsa_next_free_sgpr %d
  .amdhsa_accum_offset %d
  .amdhsa_group_segment_fixed_size 0
  .amdhsa_kernarg_size 80
  .amdhsa_user_sgpr_count 2
  .amdhsa_user_sgpr_kernarg_segment_ptr 1
  .amdhsa_system_sgpr_workgroup_id_x 1
.end_amdhsa_kernel
.text
""" % (name, vgpr, sgpr, accum)
```

```python
from common import *

STAGE = 40960
SBASE = 8192
XOFF = SBASE
WOFF = SBASE + 16384
NST = 16
L_BC = 0
L_PHI = 4096
L_HAND = SBASE + STAGE
LDS_FA = SBASE + 3*STAGE
LDS_FB = SBASE + 4*32768
QF, KF, VF = 4, 12, 20
LOG2E = 1.4426950408889634

def f2u(x):
    import struct
    return "0x%08x" % struct.unpack("<I", struct.pack("<f", x))[0]

class F:
    def __init__(self, name, kind, w_ka, layer_idx):
        self.name, self.kind, self.w_ka, self.li = name, kind, w_ka, layer_idx
        self.a = Asm()
        self.S = Regs(4, 99)

    def entry(self):
        a, S = self.a, self.S
        self.s_w = S.alloc(2); self.s_ws = S.alloc(2); self.s_phi = S.alloc(2)
        load_ptr(a, self.s_w, self.w_ka); load_ptr(a, self.s_ws, KA_WS)
        if self.kind == 'A': load_ptr(a, self.s_phi, KA_AWPHI)
        a(f"s_cmp_ge_u32 s2, 256\ns_cbranch_scc1 L_{self.name}_end")
        self.s_mt = S.alloc(); self.s_hp = S.alloc(); self.s_wave = S.alloc()
        self.t0 = S.alloc(); self.t1 = S.alloc()
        t0, t1 = self.t0, self.t1
        a(f"""
        s_and_b32 s{t0}, s2, 1
        s_lshl_b32 s{t0}, s{t0}, 3
        s_bfe_u32 s{t1}, s2, 0x30003
        s_add_u32 s{self.s_mt}, s{t0}, s{t1}
        s_bfe_u32 s{t0}, s2, 0x20001
        s_lshl_b32 s{t0}, s{t0}, 2
        s_bfe_u32 s{t1}, s2, 0x20006
        s_add_u32 s{self.s_hp}, s{t0}, s{t1}
        v_lshrrev_b32 v1, 6, v0
        v_and_b32 v0, 63, v0
        s_nop 0
        v_readfirstlane_b32 s{self.s_wave}, v1
        s_waitcnt lgkmcnt(0)
        """)
        self.rX = S.alloc(4); self.rW = S.alloc(4)
        make_srd(a, self.rX, self.s_ws, SZ_XF, WS_XF)
        make_srd(a, self.rW, self.s_w, 1024*3072*2)
        self.s_e = S.alloc(); self.s_T = S.alloc(); self.s_head = S.alloc()
        a(f"""
        s_and_b32 s{self.s_e}, s{self.s_wave}, 1
        s_bfe_u32 s{t0}, s{self.s_wave}, 0x10001
        s_lshl_b32 s{t0}, s{t0}, 1
        s_lshr_b32 s{t1}, s{self.s_wave}, 2
        s_add_u32 s{self.s_T}, s{t0}, s{t1}
        s_lshl_b32 s{self.s_head}, s{self.s_hp}, 1
        s_add_u32 s{self.s_head}, s{self.s_head}, s{self.s_e}
        s_cmp_ge_u32 s{self.s_wave}, 4
        s_cbranch_scc1 L_{self.name}_loader
        """)

    def loader(self):
        a, S = self.a, self.S
        V = Regs(28, 255)
        a.label(f"L_{self.name}_loader")
        s_lw = S.alloc(); s_cnt = S.alloc(); t = self.t0; s_tmp = self.t1
        a(f"s_sub_u32 s{s_lw}, s{self.s_wave}, 4")
        v_dx = V.alloc(); v_dw = [V.alloc() for _ in range(2)]
        s_sx = S.alloc(); s_sw = [S.alloc() for _ in range(3)]
        s_ldsx = S.alloc(); s_ldsw = S.alloc(); s_ldsend = S.alloc()
        tv = V.alloc(); tv2 = V.alloc()
        a(f"""
        s_lshl_b32 s{t}, s{self.s_mt}, 2
        s_add_u32 s{t}, s{t}, s{s_lw}
        s_lshl_b32 s{s_sx}, s{t}, 16
        v_lshlrev_b32 v{v_dx}, 4, v0
        v_lshrrev_b32 v{tv}, 3, v0
        v_lshrrev_b32 v{tv2}, 4, v0
        v_and_b32 v{tv2}, 1, v{tv2}
        v_lshlrev_b32 v{tv2}, 2, v{tv2}
        v_xor_b32 v{tv2}, v0, v{tv2}
        v_and_b32 v{tv2}, 7, v{tv2}
        v_lshlrev_b32 v{tv2}, 4, v{tv2}
        s_lshl_b32 s{t}, s{s_lw}, 4
        v_add_u32 v{tv}, s{t}, v{tv}
        v_mul_u32_u24 v{tv}, 6144, v{tv}
        v_add_u32 v{v_dw[0]}, v{tv}, v{tv2}
        v_add_u32 v{v_dw[1]}, {8*6144}, v{v_dw[0]}
        s_lshl_b32 s{s_sw[0]}, s{self.s_hp}, 7
        s_add_u32 s{s_sw[1]}, s{s_sw[0]}, 2048
        s_add_u32 s{s_sw[2]}, s{s_sw[0]}, 4096
        s_lshl_b32 s{s_ldsx}, s{s_lw}, 12
        s_add_u32 s{s_ldsx}, s{s_ldsx}, {XOFF}
        s_lshl_b32 s{s_ldsw}, s{s_lw}, 11
        s_add_u32 s{s_ldsw}, s{s_ldsw}, {WOFF}
        s_add_u32 s{s_ldsend}, s{s_ldsx}, {3*STAGE}
        """)
        if self.kind == 'A':
            rP = S.alloc(4)
            make_srd(a, rP, self.s_phi, 32*32*32*2)
            a(f"""
            s_lshl_b32 s{t}, s{s_lw}, 10
            s_add_u32 m0, s{t}, {L_PHI}
            s_lshl_b32 s{s_tmp}, s{self.s_hp}, 12
            s_add_u32 s{t}, s{t}, s{s_tmp}
            buffer_load_dwordx4 v{v_dx}, {srd(rP)}, s{t} offen lds
            """)
            S.free(rP, 4)
        def issue():
            a(f"s_mov_b32 m0, s{s_ldsx}\ns_nop 0")
            for i in range(4):
                a(f"buffer_load_dwordx4 v{v_dx}, {srd(self.rX)}, s{s_sx} offen offset:{i*1024} lds")
            for p in range(3):
                for i in range(2):
                    a(f"s_add_u32 m0, s{s_ldsw}, {p*8192+i*1024}\ns_nop 0\n"
                      f"buffer_load_dwordx4 v{v_dw[i]}, {srd(self.rW)}, s{s_sw[p]} offen lds")
            a(f"s_add_u32 s{s_sx}, s{s_sx}, 4096")
            for p in range(3): a(f"s_add_u32 s{s_sw[p]}, s{s_sw[p]}, {64*6144}")
            a(f"""s_add_u32 s{s_ldsx}, s{s_ldsx}, {STAGE}
            s_add_u32 s{s_ldsw}, s{s_ldsw}, {STAGE}
            s_cmp_eq_u32 s{s_ldsx}, s{s_ldsend}
            s_cselect_b32 s{s_tmp}, {3*STAGE}, 0
            s_sub_u32 s{s_ldsx}, s{s_ldsx}, s{s_tmp}
            s_sub_u32 s{s_ldsw}, s{s_ldsw}, s{s_tmp}
            """)
        issue(); issue()
        a(f"s_mov_b32 s{s_cnt}, {NST-2}")
        a.label(f"L_{self.name}_ld")
        a("s_waitcnt vmcnt(10)\ns_barrier")
        issue()
        a(f"""s_sub_u32 s{s_cnt}, s{s_cnt}, 1
        s_cmp_lg_u32 s{s_cnt}, 0
        s_cbranch_scc1 L_{self.name}_ld
        s_waitcnt vmcnt(10)
        s_barrier
        s_waitcnt vmcnt(0)
        s_barrier
        """)
        a(f"""
        s_barrier
        s_mul_i32 s{t}, s{s_lw}, 6144
        s_add_u32 s{t}, s{t}, {L_HAND}
        v_lshlrev_b32 v{tv}, 4, v0
        v_add_u32 v{tv}, s{t}, v{tv}
        """)
        for i in range(6):
            a(f"ds_read_b128 {vr(QF+4*i,4)}, v{tv} offset:{i*1024}")
        a("s_waitcnt lgkmcnt(0)")
        for r in [s_lw, s_cnt, s_sx, s_ldsx, s_ldsw, s_ldsend] + s_sw: S.free(r)
        a(f"s_branch L_{self.name}_mix")

    def compute(self):
        a, S = self.a, self.S
        V = Regs(28, 255)
        t0, t1 = self.t0, self.t1
        name = self.name
        acc = [[V.alloc(16, 4) for t in range(2)] for p in range(3)]
        xf = [[V.alloc(4) for t in range(2)] for b in range(2)]
        wf = [[V.alloc(4) for p in range(3)] for b in range(2)]
        s_mh = S.alloc()
        a(f"s_lshr_b32 s{s_mh}, s{self.s_wave}, 1")
        rS = S.alloc(4); rC = S.alloc(4)
        make_srd(a, rS, self.s_ws, SZ_ST, WS_ST)
        make_srd(a, rC, self.s_ws, SZ_CS, WS_CS)
        tv = V.alloc(); tv2 = V.alloc(); tv3 = V.alloc()
        st = V.alloc(32, 4)
        a(f"""
        v_and_b32 v{tv}, 31, v0
        v_lshlrev_b32 v{tv}, 3, v{tv}
        v_lshrrev_b32 v{tv2}, 5, v0
        v_lshlrev_b32 v{tv2}, 17, v{tv2}
        v_add_u32 v{tv}, v{tv}, v{tv2}
        s_lshl_b32 s{t0}, s{self.s_mt}, 10
        s_lshl_b32 s{t1}, s{s_mh}, 9
        s_add_u32 s{t0}, s{t0}, s{t1}
        """)
        for i in range(8):
            for t in range(2):
                a(f"buffer_load_dwordx2 {vr(st+16*t+2*i,2)}, v{tv}, {srd(rS)}, s{t0} offen offset:{t*256}")
            if i < 7: a(f"s_add_u32 s{t0}, s{t0}, 16384")
        cs = [V.alloc(16, 4) for p in range(2)]; csv = V.alloc()
        m = 0 if self.kind == 'A' else 1
        a(f"""
        s_lshl_b32 s{t0}, s{self.s_head}, 7
        s_add_u32 s{t0}, s{t0}, {m*3072*4}
        v_lshrrev_b32 v{tv2}, 5, v0
        v_lshlrev_b32 v{tv2}, 4, v{tv2}
        """)
        for p in range(2):
            for g in range(4):
                a(f"buffer_load_dwordx4 {vr(cs[p]+4*g,4)}, v{tv2}, {srd(rC)}, s{t0} offen offset:{g*32}")
            a(f"s_add_u32 s{t0}, s{t0}, 4096")
        a(f"""
        v_and_b32 v{tv3}, 31, v0
        v_lshlrev_b32 v{tv3}, 2, v{tv3}
        buffer_load_dword v{csv}, v{tv3}, {srd(rC)}, s{t0} offen
        """)
        vx = V.alloc(); vw = V.alloc()
        a(f"""
        s_lshl_b32 s{t0}, s{s_mh}, 13
        s_add_u32 s{t0}, s{t0}, {XOFF}
        v_lshlrev_b32 v{tv}, 4, v0
        v_add_u32 v{vx}, s{t0}, v{tv}
        v_lshrrev_b32 v{tv}, 5, v0
        v_lshlrev_b32 v{tv}, 2, v{tv}
        v_bfe_u32 v{tv2}, v0, 2, 2
        v_add_u32 v{tv}, v{tv}, v{tv2}
        v_lshlrev_b32 v{tv}, 7, v{tv}
        v_bfe_u32 v{tv2}, v0, 4, 1
        v_lshlrev_b32 v{tv2}, 1, v{tv2}
        v_bfe_u32 v{tv3}, v0, 1, 1
        v_add_u32 v{tv2}, v{tv2}, v{tv3}
        s_lshl_b32 s{t0}, s{self.s_e}, 2
        v_add_u32 v{tv2}, s{t0}, v{tv2}
        v_bfe_u32 v{tv3}, v0, 3, 1
        v_lshlrev_b32 v{tv3}, 2, v{tv3}
        v_xor_b32 v{tv2}, v{tv2}, v{tv3}
        v_lshlrev_b32 v{tv2}, 4, v{tv2}
        v_add_u32 v{tv}, v{tv}, v{tv2}
        v_and_b32 v{tv2}, 1, v0
        v_lshlrev_b32 v{tv2}, 3, v{tv2}
        v_add_u32 v{tv}, v{tv}, v{tv2}
        v_add_u32 v{vw}, {WOFF}, v{tv}
        """)
        for p in range(3):
            for t in range(2):
                for i in range(16): a(f"v_mov_b32 v{acc[p][t]+i}, 0")
        mean = [V.alloc() for _ in range(2)]; rstd = [V.alloc() for _ in range(2)]
        a("s_waitcnt vmcnt(9)")
        vb = V.alloc()
        a(f"""
        s_lshl_b32 s{t0}, s{self.s_wave}, 9
        v_and_b32 v{vb}, 31, v0
        v_lshlrev_b32 v{vb}, 2, v{vb}
        v_add_u32 v{vb}, s{t0}, v{vb}
        """)
        for t in range(2):
            b = st + 16*t
            for i in range(1, 8):
                a(f"v_add_f32 v{b}, v{b}, v{b+2*i}\nv_add_f32 v{b+1}, v{b+1}, v{b+2*i+1}")
            halfsum(a, b, tv); halfsum(a, b+1, tv)
            a(f"""
            v_mul_f32 v{mean[t]}, {f2u(2.0**-10)}, v{b}
            v_mul_f32 v{b+1}, {f2u(2.0**-10)}, v{b+1}
            v_fma_f32 v{b+1}, -v{mean[t]}, v{mean[t]}, v{b+1}
            v_max_f32 v{b+1}, 0, v{b+1}
            v_add_f32 v{b+1}, {f2u(1e-5)}, v{b+1}
            v_rsq_f32 v{rstd[t]}, v{b+1}
            s_nop 0
            v_mul_f32 v{tv}, v{mean[t]}, v{rstd[t]}
            ds_write_b32 v{vb}, v{rstd[t]} offset:{L_BC+t*256}
            ds_write_b32 v{vb}, v{tv} offset:{L_BC+t*256+128}
            """)
        V.free(st, 32)
        def reads(j, b):
            xr = lambda t: f"ds_read_b128 {vr(xf[b][t],4)}, v{vx} offset:{t*4096+j*1024}"
            wr = lambda p, u: f"ds_read_b64_tr_b16 {vr(wf[b][p]+2*u,2)}, v{vw} offset:{p*8192+j*2048+u*1024}"
            return [xr(0), wr(0,0), wr(0,1), xr(1), wr(1,0), wr(1,1), wr(2,0), wr(2,1)]
        def mfma(p, t, b):
            A = vr(acc[p][t], 16); x = vr(xf[b][t], 4); w = vr(wf[b][p], 4)
            return f"v_mfma_f32_32x32x16_bf16 {A}, {w}, {x}, {A}" if p < 2 else f"v_mfma_f32_32x32x16_bf16 {A}, {x}, {w}, {A}"
        def step(j, nr, first_wait=True):
            b = j & 1
            for m_, (p, t) in enumerate([(0,0),(0,1),(1,0),(1,1),(2,0),(2,1)]):
                if first_wait:
                    nd = {0:3, 1:4, 2:6, 4:8}.get(m_)
                    if nd is not None: a(f"s_waitcnt lgkmcnt({8-nd+min(2*m_, len(nr))})")
                a(mfma(p, t, b))
                if m_ < 4:
                    for r in nr[2*m_:2*m_+2]: a(r)
        s_cnt = S.alloc(); s_d = S.alloc(); s_pos = S.alloc(); s_neg = S.alloc()
        a(f"s_mov_b32 s{s_neg}, {(-2*STAGE) & 0xffffffff}\ns_mov_b32 s{s_cnt}, {NST-1}\ns_mov_b32 s{s_pos}, 0")
        a("s_waitcnt lgkmcnt(0)\ns_barrier")
        for r in reads(0, 0): a(r)
        a.label(f"L_{name}_cm")
        step(0, reads(1, 1)); step(1, reads(2, 0)); step(2, reads(3, 1))
        a(f"""s_add_u32 s{s_pos}, s{s_pos}, {STAGE}
        s_cmp_eq_u32 s{s_pos}, {3*STAGE}
        s_cselect_b32 s{s_d}, s{s_neg}, {STAGE}
        s_cselect_b32 s{s_pos}, 0, s{s_pos}
        s_waitcnt lgkmcnt(0)
        s_barrier
        v_add_u32 v{vx}, s{s_d}, v{vx}
        v_add_u32 v{vw}, s{s_d}, v{vw}
        """)
        step(3, reads(0, 0), first_wait=False)
        a(f"""s_sub_u32 s{s_cnt}, s{s_cnt}, 1
        s_cmp_lg_u32 s{s_cnt}, 0
        s_cbranch_scc1 L_{name}_cm
        """)
        step(0, reads(1, 1)); step(1, reads(2, 0)); step(2, reads(3, 1))
        a("s_waitcnt lgkmcnt(0)")
        step(3, [], first_wait=False)
        for r in (s_cnt, s_d, s_pos, s_neg): S.free(r)
        for b in range(2):
            for t in range(2): V.free(xf[b][t], 4)
            for p in range(3): V.free(wf[b][p], 4)
        bc = V.alloc(32, 4)
        t1f = V.alloc(24, 4)
        vh = V.alloc()
        a(f"""
        s_lshl_b32 s{t0}, s{self.s_wave}, 9
        v_lshrrev_b32 v{vh}, 5, v0
        v_lshlrev_b32 v{vh}, 4, v{vh}
        v_add_u32 v{vh}, s{t0}, v{vh}
        """)
        def bc_reads(t):
            for g in range(4):
                a(f"ds_read_b128 {vr(bc+4*g,4)}, v{vh} offset:{L_BC+t*256+g*32}")
                a(f"ds_read_b128 {vr(bc+16+4*g,4)}, v{vh} offset:{L_BC+t*256+128+g*32}")
        bc_reads(0)
        a("s_waitcnt vmcnt(0)")
        dst = lambda p, t: ((QF, KF, VF)[p] if t == 0 else t1f + 8*p)
        rq = V.alloc()
        for t in (0, 1):
            for p in range(2):
                rs = rstd[t]
                if p == 0 and self.kind == 'B':
                    a(f"v_mul_f32 v{rq}, {f2u(LOG2E*32**-0.5)}, v{rstd[t]}"); rs = rq
                A = acc[p][t]
                for r in range(16): a(f"v_fma_f32 v{A+r}, -v{mean[t]}, v{cs[p]+r}, v{A+r}")
                for r in range(16): a(f"v_mul_f32 v{A+r}, v{rs}, v{A+r}")
                for i in range(8): a(f"v_cvt_pk_bf16_f32 v{dst(p,t)+i}, v{A+2*i}, v{A+2*i+1}")
            A = acc[2][t]
            a("s_waitcnt lgkmcnt(0)")
            for r in range(16): a(f"v_mul_f32 v{A+r}, v{bc+r}, v{A+r}")
            for r in range(16): a(f"v_fma_f32 v{A+r}, -v{bc+16+r}, v{csv}, v{A+r}")
            if t == 0: bc_reads(1)
            for i in range(8): a(f"v_cvt_pk_bf16_f32 v{dst(2,t)+i}, v{A+2*i}, v{A+2*i+1}")
        a(f"""
        s_mul_i32 s{t0}, s{self.s_wave}, 6144
        s_add_u32 s{t0}, s{t0}, {L_HAND}
        v_lshlrev_b32 v{tv}, 4, v0
        v_add_u32 v{tv}, s{t0}, v{tv}
        """)
        for i in range(6):
            a(f"ds_write_b128 v{tv}, {vr(t1f+4*i,4)} offset:{i*1024}")
        a("s_waitcnt lgkmcnt(0)\ns_barrier")
        for r in (s_mh,): S.free(r)
        S.free(rS, 4); S.free(rC, 4)
        self.vhigh = V.high

    def group_sync(self):
        a, S = self.a, self.S
        rG = S.alloc(4); t0 = self.t0; name = self.name
        make_srd(a, rG, self.s_ws, 128*16, WS_FLAG + self.li*128*16)
        a(f"""
        s_waitcnt vmcnt(0)
        s_barrier
        s_cmp_lg_u32 s{self.s_wave}, 0
        s_cbranch_scc1 L_{name}_synced
        s_lshl_b32 s{t0}, s{self.s_hp}, 7
        s_lshl_b32 s{self.t1}, s{self.s_mt}, 2
        s_add_u32 s{self.t1}, s{self.t1}, s{t0}
        v_mov_b32 v1, 1
        v_mov_b32 v2, 0
        s_mov_b64 exec, 1
        buffer_store_dword v1, v2, {srd(rG)}, s{self.t1} offen sc1
        s_mov_b64 exec, 0xffff
        v_lshlrev_b32 v2, 2, v0
        s_mov_b32 s{self.t1}, 0x400000
        """)
        a.label(f"L_{name}_poll")
        a(f"""
        buffer_load_dword v1, v2, {srd(rG)}, s{t0} offen sc1
        s_waitcnt vmcnt(0)
        v_cmp_eq_u32 vcc, 0, v1
        s_cmp_eq_u64 vcc, 0
        s_cbranch_scc1 L_{name}_polled
        s_sleep 2
        s_sub_u32 s{self.t1}, s{self.t1}, 1
        s_cmp_lg_u32 s{self.t1}, 0
        s_cbranch_scc1 L_{name}_poll
        """)
        a.label(f"L_{name}_polled")
        a("s_mov_b64 exec, -1")
        a.label(f"L_{name}_synced")
        a("s_barrier")
        S.free(rG, 4)

    def finish(self, vhigh):
        a = self.a
        a.label(f"L_{self.name}_end")
        a("s_endpgm")
        return kernel_text(self.name, a, vhigh+1)
```

```python
from kf import *

L_VV  = SBASE
L_KVS = SBASE + 16384
L_ZS  = SBASE + 24576
L_PK  = SBASE + 2*STAGE

def mixer_a(f):
    a, S, name = f.a, f.S, f.name
    t0, t1 = f.t0, f.t1
    V = Regs(28, 255)
    a.label(f"L_{name}_mix")
    rP = S.alloc(4); rZ = S.alloc(4); rO = S.alloc(4)
    make_srd(a, rP, f.s_ws, SZ_KVP, WS_KVP)
    make_srd(a, rZ, f.s_ws, SZ_ZP, WS_ZP)
    make_srd(a, rO, f.s_ws, SZ_OF, WS_OF)
    l16 = V.alloc(); tv = V.alloc(); tv2 = V.alloc(); tv3 = V.alloc()
    s_L = S.alloc()
    a(f"v_lshlrev_b32 v{l16}, 4, v0\ns_mov_b32 s{s_L}, {f2u(LOG2E)}")
    wp = V.alloc(8, 4)
    a(f"""
    v_lshrrev_b32 v{tv}, 5, v0
    v_lshlrev_b32 v{tv}, 2, v{tv}
    v_bfe_u32 v{tv2}, v0, 2, 2
    v_add_u32 v{tv}, v{tv}, v{tv2}
    v_lshlrev_b32 v{tv}, 6, v{tv}
    v_bfe_u32 v{tv2}, v0, 4, 1
    v_lshlrev_b32 v{tv2}, 5, v{tv2}
    v_add_u32 v{tv}, v{tv}, v{tv2}
    v_and_b32 v{tv2}, 3, v0
    v_lshlrev_b32 v{tv2}, 3, v{tv2}
    v_add_u32 v{tv}, v{tv}, v{tv2}
    s_lshl_b32 s{t0}, s{f.s_e}, 11
    v_add_u32 v{tv}, s{t0}, v{tv}
    """)
    for s in range(2):
        for u in range(2):
            a(f"ds_read_b64_tr_b16 {vr(wp+4*s+2*u,2)}, v{tv} offset:{L_PHI+s*1024+u*512}")
    a(f"""
    s_lshl_b32 s{t0}, s{f.s_e}, 13
    s_lshl_b32 s{t1}, s{f.s_T}, 11
    s_add_u32 s{t0}, s{t0}, s{t1}
    v_add_u32 v{tv2}, s{t0}, v{l16}
    ds_write_b128 v{tv2}, {vr(VF,4)} offset:{L_VV}
    ds_write_b128 v{tv2}, {vr(VF+4,4)} offset:{L_VV+1024}
    s_waitcnt lgkmcnt(2)
    """)
    p = V.alloc(16, 4); ep = V.alloc(16, 4); en = V.alloc(16, 4)
    mx = V.alloc(); mn = V.alloc(); sp = V.alloc(); sn = V.alloc()
    def feature(X, outp, outn):
        a(f"v_mfma_f32_32x32x16_bf16 {vr(p,16)}, {vr(wp,4)}, {vr(X,4)}, 0")
        a(f"v_mfma_f32_32x32x16_bf16 {vr(p,16)}, {vr(wp+4,4)}, {vr(X+4,4)}, {vr(p,16)}")
        for (d, op3, op2) in ((mx, "v_max3_f32", "v_max_f32"), (mn, "v_min3_f32", "v_min_f32")):
            a(f"{op3} v{d}, v{p}, v{p+1}, v{p+2}")
            for i in range(3, 15, 2): a(f"{op3} v{d}, v{d}, v{p+i}, v{p+i+1}")
            a(f"{op2} v{d}, v{d}, v{p+15}")
        halfsum(a, mx, tv, "v_max_f32"); halfsum(a, mn, tv2, "v_min_f32")
        a(f"v_mul_f32 v{mx}, s{s_L}, v{mx}\nv_mul_f32 v{mn}, s{s_L}, v{mn}")
        for r in range(16):
            a(f"v_fma_f32 v{ep+r}, v{p+r}, s{s_L}, -v{mx}")
            a(f"v_fma_f32 v{en+r}, -v{p+r}, s{s_L}, v{mn}")
        for r in range(16):
            a(f"v_exp_f32 v{ep+r}, v{ep+r}\nv_exp_f32 v{en+r}, v{en+r}")
        a(f"v_add_f32 v{sp}, v{ep}, v{ep+1}\nv_add_f32 v{sn}, v{en}, v{en+1}")
        for r in range(2, 16):
            a(f"v_add_f32 v{sp}, v{sp}, v{ep+r}\nv_add_f32 v{sn}, v{sn}, v{en+r}")
        halfsum(a, sp, tv); halfsum(a, sn, tv2)
        a(f"v_rcp_f32 v{sp}, v{sp}\nv_rcp_f32 v{sn}, v{sn}\ns_nop 0")
        for r in range(16):
            a(f"v_mul_f32 v{ep+r}, v{sp}, v{ep+r}\nv_mul_f32 v{en+r}, v{sn}, v{en+r}")
        for i in range(8):
            a(f"v_cvt_pk_bf16_f32 v{outp+i}, v{ep+2*i}, v{ep+2*i+1}")
            a(f"v_cvt_pk_bf16_f32 v{outn+i}, v{en+2*i}, v{en+2*i+1}")
    FK = V.alloc(16, 4); FQ = V.alloc(16, 4)
    feature(KF, FK, FK+8)
    pa = [V.alloc() for g in range(4)]
    a(f"""
    s_lshl_b32 s{t0}, s{f.s_e}, 14
    s_lshl_b32 s{t1}, s{f.s_T}, 12
    s_add_u32 s{t0}, s{t0}, s{t1}
    s_add_u32 s{t0}, s{t0}, {L_PK}
    v_and_b32 v{tv}, 31, v0
    v_lshlrev_b32 v{tv2}, 6, v{tv}
    v_add_u32 v{tv2}, s{t0}, v{tv2}
    v_bfe_u32 v{tv}, v0, 1, 3
    v_lshrrev_b32 v{tv3}, 5, v0
    v_xor_b32 v{tv}, v{tv}, v{tv3}
    """)
    for g in range(4):
        a(f"v_xor_b32 v{pa[g]}, {2*g}, v{tv}\nv_lshlrev_b32 v{pa[g]}, 3, v{pa[g]}\nv_add_u32 v{pa[g]}, v{pa[g]}, v{tv2}")
    for sg in range(2):
        for g in range(4):
            a(f"ds_write_b64 v{pa[g]}, {vr(FK+8*sg+2*g,2)} offset:{sg*2048}")
    feature(QF, FQ, FQ+8)
    a("s_waitcnt lgkmcnt(0)\ns_barrier")
    s_sg = S.alloc(); s_kd = S.alloc()
    a(f"s_bfe_u32 s{s_sg}, s{f.s_wave}, 0x10001\ns_lshr_b32 s{s_kd}, s{f.s_wave}, 2")
    ra = [V.alloc() for u in range(2)]; rv = V.alloc()
    for u in range(2):
        a(f"""
        v_lshrrev_b32 v{tv}, 5, v0
        v_lshlrev_b32 v{tv}, 2, v{tv}
        v_bfe_u32 v{tv2}, v0, 2, 2
        v_add_u32 v{tv}, v{tv}, v{tv2}
        v_add_u32 v{tv}, {8*u}, v{tv}
        v_bfe_u32 v{tv2}, v{tv}, 1, 3
        v_bfe_u32 v{tv3}, v0, 4, 1
        v_lshlrev_b32 v{tv3}, 2, v{tv3}
        v_xor_b32 v{tv2}, v{tv2}, v{tv3}
        v_and_b32 v{tv3}, 3, v0
        v_xor_b32 v{tv2}, v{tv2}, v{tv3}
        v_lshlrev_b32 v{tv2}, 3, v{tv2}
        v_lshlrev_b32 v{tv}, 6, v{tv}
        v_add_u32 v{tv}, v{tv}, v{tv2}
        s_lshl_b32 s{t0}, s{f.s_e}, 14
        s_lshl_b32 s{t1}, s{s_sg}, 11
        s_add_u32 s{t0}, s{t0}, s{t1}
        s_add_u32 s{t0}, s{t0}, {L_PK}
        v_add_u32 v{ra[u]}, s{t0}, v{tv}
        """)
    a(f"s_lshl_b32 s{t0}, s{f.s_e}, 13\nv_add_u32 v{rv}, s{t0}, v{l16}")
    Af = V.alloc(32, 4); Bf = V.alloc(32, 4); D = V.alloc(16, 4); ones = V.alloc(4)
    for T in range(4):
        for s in range(2):
            for u in range(2):
                a(f"ds_read_b64_tr_b16 {vr(Af+8*T+4*s+2*u,2)}, v{ra[u]} offset:{T*4096+s*1024}")
        if T == 1: a("s_waitcnt lgkmcnt(4)")
    a(f"s_cmp_lg_u32 s{s_kd}, 0\ns_cbranch_scc1 L_{name}_zpart")
    a("s_waitcnt lgkmcnt(4)")
    for T in range(4):
        for s in range(2):
            a(f"ds_read_b128 {vr(Bf+8*T+4*s,4)}, v{rv} offset:{L_VV+T*2048+s*1024}")
    a("s_waitcnt lgkmcnt(0)")
    for T in range(4):
        for s in range(2):
            C = "0" if (T == 0 and s == 0) else vr(D, 16)
            a(f"v_mfma_f32_32x32x16_bf16 {vr(D,16)}, {vr(Af+8*T+4*s,4)}, {vr(Bf+8*T+4*s,4)}, {C}")
    for i in range(8): a(f"v_cvt_pk_bf16_f32 v{Bf+i}, v{D+2*i}, v{D+2*i+1}")
    a(f"""
    s_lshl_b32 s{t0}, s{f.s_head}, 16
    s_lshl_b32 s{t1}, s{f.s_mt}, 12
    s_add_u32 s{t0}, s{t0}, s{t1}
    s_lshl_b32 s{t1}, s{s_sg}, 11
    s_add_u32 s{t0}, s{t0}, s{t1}
    buffer_store_dwordx4 {vr(Bf,4)}, v{l16}, {srd(rP)}, s{t0} offen sc1
    buffer_store_dwordx4 {vr(Bf+4,4)}, v{l16}, {srd(rP)}, s{t0} offen offset:1024 sc1
    s_branch L_{name}_parted
    """)
    a.label(f"L_{name}_zpart")
    for i in range(4): a(f"v_mov_b32 v{ones+i}, 0x3f803f80")
    a("s_waitcnt lgkmcnt(0)")
    for T in range(4):
        for s in range(2):
            C = "0" if (T == 0 and s == 0) else vr(D, 16)
            a(f"v_mfma_f32_32x32x16_bf16 {vr(D,16)}, {vr(ones,4)}, {vr(Af+8*T+4*s,4)}, {C}")
    a(f"""
    s_lshl_b32 s{t0}, s{f.s_head}, 12
    s_lshl_b32 s{t1}, s{s_sg}, 11
    s_add_u32 s{t0}, s{t0}, s{t1}
    s_lshl_b32 s{t1}, s{f.s_mt}, 7
    s_add_u32 s{t0}, s{t0}, s{t1}
    v_lshlrev_b32 v{tv}, 2, v0
    s_mov_b64 exec, 0xffffffff
    buffer_store_dword v{D}, v{tv}, {srd(rZ)}, s{t0} offen sc1
    s_mov_b64 exec, -1
    """)
    a.label(f"L_{name}_parted")
    f.group_sync()
    V.free(Af, 32); V.free(Bf, 32)
    Pf = V.alloc(64, 4); isel = V.alloc(4); zl = V.alloc(8, 4)
    s_fs = s_kd
    a(f"""
    s_lshl_b32 s{t0}, s{f.s_head}, 16
    s_lshl_b32 s{t1}, s{s_sg}, 11
    s_add_u32 s{t0}, s{t0}, s{t1}
    s_lshl_b32 s{t1}, s{s_fs}, 10
    s_add_u32 s{t0}, s{t0}, s{t1}
    """)
    for i in range(16):
        a(f"buffer_load_dwordx4 {vr(Pf+4*i,4)}, v{l16}, {srd(rP)}, s{t0} offen sc1")
        if i < 15: a(f"s_add_u32 s{t0}, s{t0}, 4096")
    a(f"""
    s_lshl_b32 s{t0}, s{f.s_head}, 12
    s_lshl_b32 s{t1}, s{s_sg}, 11
    s_add_u32 s{t0}, s{t0}, s{t1}
    v_and_b32 v{tv}, 31, v0
    v_lshlrev_b32 v{tv}, 2, v{tv}
    v_lshrrev_b32 v{tv2}, 5, v0
    v_lshlrev_b32 v{tv2}, 10, v{tv2}
    v_add_u32 v{tv}, v{tv}, v{tv2}
    """)
    for i in range(8):
        a(f"buffer_load_dword v{zl+i}, v{tv}, {srd(rZ)}, s{t0} offen offset:{i*128} sc1")
    a(f"""
    v_and_b32 v{tv}, 31, v0
    v_lshrrev_b32 v{tv2}, 5, v0
    v_lshlrev_b32 v{tv2}, 2, v{tv2}
    v_sub_u32 v{tv}, v{tv}, v{tv2}
    """)
    for d in range(4):
        j0 = 2*d
        m0_ = (j0 & 3) + 8*(j0 >> 2)
        a(f"""
        v_mov_b32 v{isel+d}, 0
        v_mov_b32 v{tv2}, 0x3f80
        v_cmp_eq_u32 vcc, {m0_}, v{tv}
        v_cndmask_b32 v{isel+d}, v{isel+d}, v{tv2}, vcc
        v_mov_b32 v{tv2}, 0x3f800000
        v_cmp_eq_u32 vcc, {m0_+1}, v{tv}
        v_cndmask_b32 v{isel+d}, v{isel+d}, v{tv2}, vcc
        """)
    for i in range(16):
        a(f"s_waitcnt vmcnt({8+15-i})")
        C = "0" if i == 0 else vr(D, 16)
        a(f"v_mfma_f32_32x32x16_bf16 {vr(D,16)}, {vr(isel,4)}, {vr(Pf+4*i,4)}, {C}")
    kvs = V.alloc(4)
    for i in range(4): a(f"v_cvt_pk_bf16_f32 v{kvs+i}, v{D+2*i}, v{D+2*i+1}")
    a(f"""
    s_lshl_b32 s{t0}, s{f.s_e}, 12
    s_lshl_b32 s{t1}, s{s_sg}, 11
    s_add_u32 s{t0}, s{t0}, s{t1}
    s_lshl_b32 s{t1}, s{s_fs}, 10
    s_add_u32 s{t1}, s{t0}, s{t1}
    v_add_u32 v{tv2}, s{t1}, v{l16}
    ds_write_b128 v{tv2}, {vr(kvs,4)} offset:{L_KVS}
    s_waitcnt vmcnt(0)
    s_cmp_lg_u32 s{s_fs}, 0
    s_cbranch_scc1 L_{name}_zdone
    """)
    for i in range(1, 8): a(f"v_add_f32 v{zl}, v{zl}, v{zl+i}")
    halfsum(a, zl, tv)
    za = Pf; ones = Pf + 4
    a(f"""
    v_cvt_pk_bf16_f32 v{tv}, v{zl}, v{zl}
    v_lshlrev_b32 v{tv3}, 16, v{tv}
    v_sub_f32 v{tv3}, v{zl}, v{tv3}
    v_cvt_pk_bf16_f32 v{za}, v{zl}, v{tv3}
    v_mov_b32 v{za+1}, 0
    v_mov_b32 v{za+2}, 0
    v_mov_b32 v{za+3}, 0
    v_mov_b32 v{tv}, 0
    v_cmp_gt_u32 vcc, 32, v0
    v_cndmask_b32 v{za}, v{tv}, v{za}, vcc
    v_mov_b32 v{ones}, 0x3f803f80
    v_mov_b32 v{ones+1}, 0
    v_mov_b32 v{ones+2}, 0
    v_mov_b32 v{ones+3}, 0
    v_mfma_f32_32x32x16_bf16 {vr(D,16)}, {vr(za,4)}, {vr(ones,4)}, 0
    """)
    zf = Pf + 8
    for i in range(8): a(f"v_cvt_pk_bf16_f32 v{zf+i}, v{D+2*i}, v{D+2*i+1}")
    a(f"""
    v_add_u32 v{tv2}, s{t0}, v{l16}
    ds_write_b128 v{tv2}, {vr(zf,4)} offset:{L_ZS}
    ds_write_b128 v{tv2}, {vr(zf+4,4)} offset:{L_ZS+1024}
    """)
    a.label(f"L_{name}_zdone")
    a("s_waitcnt lgkmcnt(0)\ns_barrier")
    kf_ = Pf; zf_ = Pf + 16; num = Pf + 32; den = Pf + 48
    a(f"s_lshl_b32 s{t0}, s{f.s_e}, 12\nv_add_u32 v{tv2}, s{t0}, v{l16}")
    for i in range(4): a(f"ds_read_b128 {vr(kf_+4*i,4)}, v{tv2} offset:{L_KVS+i*1024}")
    for i in range(4): a(f"ds_read_b128 {vr(zf_+4*i,4)}, v{tv2} offset:{L_ZS+i*1024}")
    a("s_waitcnt lgkmcnt(4)")
    for i in range(4):
        a(f"v_mfma_f32_32x32x16_bf16 {vr(num,16)}, {vr(kf_+4*i,4)}, {vr(FQ+4*i,4)}, {'0' if i == 0 else vr(num,16)}")
    a("s_waitcnt lgkmcnt(0)")
    for i in range(4):
        a(f"v_mfma_f32_32x32x16_bf16 {vr(den,16)}, {vr(zf_+4*i,4)}, {vr(FQ+4*i,4)}, {'0' if i == 0 else vr(den,16)}")
    a(f"v_add_f32 v{tv}, {f2u(1e-6)}, v{den}\nv_rcp_f32 v{tv}, v{tv}\ns_nop 0")
    for i in range(16): a(f"v_mul_f32 v{num+i}, v{tv}, v{num+i}")
    for i in range(8): a(f"v_cvt_pk_bf16_f32 v{kf_+i}, v{num+2*i}, v{num+2*i+1}")
    a(f"""
    s_lshl_b32 s{t0}, s{f.s_mt}, 2
    s_add_u32 s{t0}, s{t0}, s{f.s_T}
    s_lshl_b32 s{t0}, s{t0}, 16
    s_lshl_b32 s{t1}, s{f.s_head}, 11
    s_add_u32 s{t0}, s{t0}, s{t1}
    buffer_store_dwordx4 {vr(kf_,4)}, v{l16}, {srd(rO)}, s{t0} offen
    buffer_store_dwordx4 {vr(kf_+4,4)}, v{l16}, {srd(rO)}, s{t0} offen offset:1024
    """)
    return V.high

def gen_fa(name, li):
    f = F(name, 'A', KA_AWQKV, li)
    f.entry()
    f.compute()
    vh = mixer_a(f)
    f.a("s_endpgm")
    f.loader()
    return f.finish(max(vh, f.vhigh))
```

```python
from kf import *

G_SHIFT = 40.0

def mixer_b(f):
    a, S, name = f.a, f.S, f.name
    t0, t1 = f.t0, f.t1
    V = Regs(28, 255)
    a.label(f"L_{name}_mix")
    rKV = S.alloc(4); rO = S.alloc(4)
    make_srd(a, rKV, f.s_ws, SZ_KV, WS_KV)
    make_srd(a, rO, f.s_ws, SZ_OF, WS_OF)
    l16 = V.alloc()
    a(f"""
    v_lshlrev_b32 v{l16}, 4, v0
    s_lshl_b32 s{t0}, s{f.s_head}, 18
    s_lshl_b32 s{t1}, s{f.s_mt}, 14
    s_add_u32 s{t0}, s{t0}, s{t1}
    s_lshl_b32 s{t1}, s{f.s_T}, 12
    s_add_u32 s{t0}, s{t0}, s{t1}
    """)
    for i in range(4):
        a(f"buffer_store_dwordx4 {vr(KF+4*i,4)}, v{l16}, {srd(rKV)}, s{t0} offen offset:{i*1024} sc1")
    f.group_sync()
    Sb = [V.alloc(16, 4) for _ in range(2)]
    Kb = [V.alloc(8, 4) for _ in range(2)]
    Vb = [V.alloc(8, 4) for _ in range(2)]
    P = V.alloc(8, 4); O = V.alloc(16, 4); Cc = V.alloc(16, 4); Ls = V.alloc(4); sel = V.alloc(4)
    vbase = V.alloc(); vcur = V.alloc(); vnxt = V.alloc(); tv = V.alloc(); tv2 = V.alloc()
    s_src = S.alloc(); s_i = S.alloc(); s_dl = S.alloc(); s_hb = S.alloc(); s_retry = S.alloc(); s_cnt = S.alloc()
    s_cur = S.alloc(); s_nxt = S.alloc()
    a(f"""
    s_mov_b32 s{s_retry}, 0
    s_lshr_b32 s{t0}, s{f.s_wave}, 2
    s_lshl_b32 s{t1}, s{f.s_hp}, 1
    s_add_u32 s{t1}, s{t1}, s{t0}
    s_lshl_b32 s{s_hb}, s{t1}, 18
    s_and_b32 s{t1}, s{f.s_wave}, 3
    s_lshl_b32 s{t1}, s{t1}, 12
    s_add_u32 s{s_hb}, s{s_hb}, s{t1}
    s_lshl_b32 s{t0}, s{t0}, 14
    s_add_u32 s{s_dl}, s{t0}, s{t1}
    s_add_u32 s{s_dl}, s{s_dl}, {SBASE}
    s_lshl_b32 s{t0}, s{f.s_e}, 14
    s_add_u32 s{t0}, s{t0}, {SBASE}
    v_add_u32 v{vbase}, s{t0}, v{l16}
    """)
    a(f"""
    v_and_b32 v{tv}, 7, v0
    v_bfe_u32 v{tv2}, v0, 4, 1
    v_lshlrev_b32 v{tv2}, 2, v{tv2}
    v_cmp_eq_u32 vcc, v{tv}, v{tv2}
    v_mov_b32 v{tv}, 0
    v_mov_b32 v{tv2}, 0x3f803f80
    v_cndmask_b32 v{sel}, v{tv}, v{tv2}, vcc
    v_mov_b32 v{sel+1}, v{sel}
    v_mov_b32 v{sel+2}, v{sel}
    v_mov_b32 v{sel+3}, v{sel}
    """)
    def dma(stage_expr_sgpr):
        a(f"""
        s_add_u32 s{t0}, s{f.s_mt}, s{stage_expr_sgpr}
        s_and_b32 s{t0}, s{t0}, 15
        s_lshl_b32 s{t0}, s{t0}, 14
        s_add_u32 s{s_src}, s{s_hb}, s{t0}
        s_and_b32 s{t0}, s{stage_expr_sgpr}, 3
        s_lshl_b32 s{t0}, s{t0}, 15
        s_add_u32 m0, s{s_dl}, s{t0}
        s_add_u32 s{stage_expr_sgpr}, s{stage_expr_sgpr}, 1
        """)
        for i in range(4):
            a(f"buffer_load_dwordx4 v{l16}, {srd(rKV)}, s{s_src} offen offset:{i*1024} sc1 lds")
    a.label(f"L_{name}_att")
    a(f"s_mov_b32 s{s_i}, 0")
    dma(s_i); dma(s_i); dma(s_i)
    for i in range(16): a(f"v_mov_b32 v{O+i}, 0")
    for i in range(4): a(f"v_mov_b32 v{Ls+i}, 0")
    a(f"""
    s_mov_b32 s{s_cur}, 0
    s_mov_b32 s{s_nxt}, 32768
    v_mov_b32 v{vcur}, v{vbase}
    v_add_u32 v{vnxt}, s{s_nxt}, v{vbase}
    s_waitcnt vmcnt(8)
    s_barrier
    """)
    rdK = lambda b, addr, tile: [f"ds_read_b128 {vr(Kb[b]+4*s,4)}, v{addr} offset:{tile*4096+s*1024}" for s in range(2)]
    rdV = lambda b, addr, tile: [f"ds_read_b128 {vr(Vb[b]+4*s,4)}, v{addr} offset:{tile*4096+2048+s*1024}" for s in range(2)]
    for r in rdK(0, vcur, 0) + rdK(1, vcur, 1) + rdV(0, vcur, 0): a(r)
    a("s_waitcnt lgkmcnt(0)")
    qk = lambda D, b, s, C: f"v_mfma_f32_32x32x16_bf16 {vr(D,16)}, {vr(Kb[b]+4*s,4)}, {vr(QF+4*s,4)}, {C}"
    a(f"s_cmp_lg_u32 s{s_retry}, 0\ns_cbranch_scc1 L_{name}_havec")
    a(qk(Sb[0], 0, 0, "0")); a(qk(Sb[0], 0, 1, vr(Sb[0], 16)))
    def maxtree(dst, src):
        a(f"v_max3_f32 v{dst}, v{src}, v{src+1}, v{src+2}")
        for i in range(3, 15, 2): a(f"v_max3_f32 v{dst}, v{dst}, v{src+i}, v{src+i+1}")
        a(f"v_max_f32 v{dst}, v{dst}, v{src+15}")
    maxtree(tv, Sb[0])
    halfsum(a, tv, tv2, "v_max_f32")
    a(f"v_add_f32 v{tv}, {f2u(G_SHIFT)}, v{tv}")
    for i in range(16): a(f"v_sub_f32 v{Cc+i}, 0, v{tv}")
    a.label(f"L_{name}_havec")
    a(qk(Sb[0], 0, 0, vr(Cc, 16))); a(qk(Sb[0], 0, 1, vr(Sb[0], 16)))
    a("s_nop 11")

    def tile(j, last_stage):
        Sc, Sn = Sb[j & 1], Sb[(j+1) & 1]
        do_qk = not (last_stage and j == 3)
        kr = []
        if j + 2 < 4: kr = rdK(j & 1, vcur, j+2)
        elif not last_stage: kr = rdK(j & 1, vnxt, j-2)
        vr_ = []
        if j + 1 < 4: vr_ = rdV((j+1) & 1, vcur, j+1)
        elif not last_stage: vr_ = rdV((j+1) & 1, vnxt, 0)
        kb = (j+1) & 1; vb_ = j & 1
        ex = lambda r: a(f"v_exp_f32 v{Sc+r}, v{Sc+r}")
        cv = lambda i: a(f"v_cvt_pk_bf16_f32 v{P+i}, v{Sc+2*i}, v{Sc+2*i+1}")
        pv = lambda s: a(f"v_mfma_f32_32x32x16_bf16 {vr(O,16)}, {vr(Vb[vb_]+4*s,4)}, {vr(P+4*s,4)}, {vr(O,16)}")
        sm = lambda s: a(f"v_mfma_f32_16x16x32_bf16 {vr(Ls,4)}, {vr(sel,4)}, {vr(P+4*s,4)}, {vr(Ls,4)}")
        if do_qk:
            a("s_waitcnt lgkmcnt(2)")
            a(qk(Sn, kb, 0, vr(Cc, 16)))
        for r in range(0, 4): ex(r)
        if do_qk: a(qk(Sn, kb, 1, vr(Sn, 16)))
        for r in kr: a(r)
        for r in range(4, 8): ex(r)
        cv(0); cv(1); cv(2)
        ex(8)
        cv(3)
        a(f"s_waitcnt lgkmcnt({len(kr)})")
        ex(9)
        pv(0)
        ex(10); ex(11)
        sm(0)
        for r in range(12, 16): ex(r)
        cv(4); cv(5); cv(6); cv(7)
        for r in vr_: a(r)
        pv(1)
        sm(1)

    def stage(do_dma, last, second_last=False):
        tile(0, last); tile(1, last)
        if not last:
            a(f"s_waitcnt vmcnt({0 if second_last else 4})\ns_barrier")
            if do_dma: dma(s_i)
        tile(2, last); tile(3, last)
        if not last:
            a(f"""
            s_mov_b32 s{s_cur}, s{s_nxt}
            s_add_u32 s{s_nxt}, s{s_nxt}, 32768
            s_and_b32 s{s_nxt}, s{s_nxt}, 0x1ffff
            v_mov_b32 v{vcur}, v{vnxt}
            v_add_u32 v{vnxt}, s{s_nxt}, v{vbase}
            """)
    a(f"s_mov_b32 s{s_cnt}, 13")
    a.label(f"L_{name}_st")
    stage(True, False)
    a(f"s_sub_u32 s{s_cnt}, s{s_cnt}, 1\ns_cmp_lg_u32 s{s_cnt}, 0\ns_cbranch_scc1 L_{name}_st")
    stage(False, False)
    stage(False, False, second_last=True)
    stage(False, True)
    vflag = V.alloc()
    a(f"""
    s_cmp_lg_u32 s{s_retry}, 0
    s_cbranch_scc1 L_{name}_fin
    v_mov_b32 v{tv}, {f2u(2.0**100)}
    s_nop 4
    v_cmp_nlt_f32 vcc, v{Ls}, v{tv}
    s_cmp_lg_u64 vcc, 0
    s_cselect_b32 s{t0}, 1, 0
    v_mov_b32 v{vflag}, s{t0}
    s_lshl_b32 s{t0}, s{f.s_wave}, 2
    v_mov_b32 v{tv}, s{t0}
    ds_write_b32 v{tv}, v{vflag} offset:2048
    s_waitcnt lgkmcnt(0)
    s_barrier
    v_and_b32 v{tv}, 7, v0
    v_lshlrev_b32 v{tv}, 2, v{tv}
    ds_read_b32 v{vflag}, v{tv} offset:2048
    s_waitcnt lgkmcnt(0)
    v_cmp_ne_u32 vcc, 0, v{vflag}
    s_cmp_eq_u64 vcc, 0
    s_cbranch_scc1 L_{name}_fin
    """)
    a(f"""
    s_mov_b32 s{s_retry}, 1
    s_lshl_b32 s{t0}, s{f.s_head}, 18
    s_mov_b32 s{s_cnt}, 64
    v_mov_b32 v{vflag}, 0xff800000
    """)
    a.label(f"L_{name}_mx")
    a(f"""
    buffer_load_dwordx4 {vr(Kb[0],4)}, v{l16}, {srd(rKV)}, s{t0} offen sc1
    buffer_load_dwordx4 {vr(Kb[0]+4,4)}, v{l16}, {srd(rKV)}, s{t0} offen offset:1024 sc1
    s_waitcnt vmcnt(0)
    """)
    a(qk(Sb[0], 0, 0, "0")); a(qk(Sb[0], 0, 1, vr(Sb[0], 16)))
    maxtree(tv, Sb[0])
    a(f"""
    v_max_f32 v{vflag}, v{vflag}, v{tv}
    s_add_u32 s{t0}, s{t0}, 4096
    s_sub_u32 s{s_cnt}, s{s_cnt}, 1
    s_cmp_lg_u32 s{s_cnt}, 0
    s_cbranch_scc1 L_{name}_mx
    """)
    halfsum(a, vflag, tv2, "v_max_f32")
    a(f"v_add_f32 v{vflag}, {f2u(G_SHIFT)}, v{vflag}")
    for i in range(16): a(f"v_sub_f32 v{Cc+i}, 0, v{vflag}")
    a(f"s_barrier\ns_branch L_{name}_att")
    a.label(f"L_{name}_fin")
    a(f"s_nop 7\nv_rcp_f32 v{tv}, v{Ls}\ns_nop 0")
    for i in range(16): a(f"v_mul_f32 v{O+i}, v{tv}, v{O+i}")
    for i in range(8): a(f"v_cvt_pk_bf16_f32 v{P+i}, v{O+2*i}, v{O+2*i+1}")
    a(f"""
    s_lshl_b32 s{t0}, s{f.s_mt}, 2
    s_add_u32 s{t0}, s{t0}, s{f.s_T}
    s_lshl_b32 s{t0}, s{t0}, 16
    s_lshl_b32 s{t1}, s{f.s_head}, 11
    s_add_u32 s{t0}, s{t0}, s{t1}
    buffer_store_dwordx4 {vr(P,4)}, v{l16}, {srd(rO)}, s{t0} offen
    buffer_store_dwordx4 {vr(P+4,4)}, v{l16}, {srd(rO)}, s{t0} offen offset:1024
    """)
    return V.high

def gen_fb(name, li):
    f = F(name, 'B', KA_BWQKV, li)
    f.entry()
    f.compute()
    vh = mixer_b(f)
    f.a("s_endpgm")
    f.loader()
    return f.finish(max(vh, f.vhigh))
```

```python
from common import *

LDS_P = 131072

def gen_p(name, wo_ka, final, npre=3):
    a = Asm(); V = Regs(1, 255); S = Regs(4, 99)
    s_wo = S.alloc(2); s_ws = S.alloc(2); s_out = S.alloc(2)
    load_ptr(a, s_wo, wo_ka); load_ptr(a, s_ws, KA_WS)
    if final: load_ptr(a, s_out, KA_OUT)
    a("s_cmp_ge_u32 s2, 256\ns_cbranch_scc1 L_%s_end" % name)
    s_mt = S.alloc(); s_nt = S.alloc(); s_w = S.alloc(); t0 = S.alloc(); t1 = S.alloc()
    a(f"""
    s_and_b32 s{t0}, s2, 3
    s_lshl_b32 s{t0}, s{t0}, 2
    s_bfe_u32 s{t1}, s2, 0x20003
    s_add_u32 s{s_mt}, s{t0}, s{t1}
    s_bfe_u32 s{t0}, s2, 0x10002
    s_lshl_b32 s{t0}, s{t0}, 3
    s_bfe_u32 s{t1}, s2, 0x30005
    s_add_u32 s{s_nt}, s{t0}, s{t1}
    v_lshrrev_b32 v1, 6, v0
    v_and_b32 v0, 63, v0
    s_nop 0
    v_readfirstlane_b32 s{s_w}, v1
    s_waitcnt lgkmcnt(0)
    """)
    rW = S.alloc(4); rO = S.alloc(4); rX = S.alloc(4); rS = S.alloc(4)
    make_srd(a, rW, s_wo, 1024*1024*2)
    make_srd(a, rO, s_ws, SZ_OF, WS_OF)
    make_srd(a, rX, s_ws, SZ_XF, WS_XF)
    if final: make_srd(a, rS, s_out, 2048*1024*2)
    else: make_srd(a, rS, s_ws, SZ_ST, WS_ST)
    v_dw = V.alloc(); v_l16 = V.alloc(); tv = V.alloc(); tv2 = V.alloc()
    a(f"""
    v_lshrrev_b32 v{tv}, 3, v0
    v_lshrrev_b32 v{tv2}, 4, v0
    v_and_b32 v{tv2}, 1, v{tv2}
    v_lshlrev_b32 v{tv2}, 2, v{tv2}
    v_xor_b32 v{tv2}, v0, v{tv2}
    v_and_b32 v{tv2}, 7, v{tv2}
    v_lshlrev_b32 v{tv2}, 4, v{tv2}
    s_lshl_b32 s{t0}, s{s_w}, 3
    v_add_u32 v{tv}, s{t0}, v{tv}
    v_lshlrev_b32 v{tv}, 11, v{tv}
    v_add_u32 v{v_dw}, v{tv}, v{tv2}
    v_lshlrev_b32 v{v_l16}, 4, v0
    """)
    s_wcol = S.alloc(); s_ldsw = S.alloc(); s_osrc = S.alloc(); s_xsrc = S.alloc(); s_wsrc = S.alloc()
    a(f"""
    s_lshl_b32 s{s_wcol}, s{s_nt}, 7
    s_lshl_b32 s{s_ldsw}, s{s_w}, 10
    s_lshl_b32 s{t0}, s{s_mt}, 2
    s_add_u32 s{t0}, s{t0}, s{s_w}
    s_lshl_b32 s{s_osrc}, s{t0}, 16
    s_lshl_b32 s{t1}, s{s_nt}, 12
    s_add_u32 s{s_xsrc}, s{s_osrc}, s{t1}
    """)
    NSLOT = npre + 1
    of = [V.alloc(32, 4) for _ in range(NSLOT)]
    xo = V.alloc(16, 4)
    acc = [V.alloc(16, 4) for _ in range(2)]
    wf = [[V.alloc(4) for c in range(2)] for b in range(2)]
    s_so = S.alloc()
    def issue(g):
        L = []
        for i in range(4):
            L.append(f"s_add_u32 m0, s{s_ldsw}, {(128*g+32*i)*128}\ns_add_u32 s{s_wsrc}, s{s_wcol}, {(128*g+32*i)*2048}\n"
                     f"buffer_load_dwordx4 v{v_dw}, {srd(rW)}, s{s_wsrc} offen lds")
        for j in range(8):
            pre = f"s_add_u32 s{s_so}, s{s_osrc}, {g*8192+(j//4)*4096}\n" if j % 4 == 0 else ""
            L.append(pre + f"buffer_load_dwordx4 {vr(of[g%NSLOT]+4*j,4)}, v{v_l16}, {srd(rO)}, s{s_so} offen offset:{(j%4)*1024}")
        return L
    for g in range(npre):
        for x in issue(g): a(x)
        if g == 0:
            for j in range(4):
                a(f"buffer_load_dwordx4 {vr(xo+4*j,4)}, v{v_l16}, {srd(rX)}, s{s_xsrc} offen offset:{j*1024}")
    v_w = [V.alloc() for c in range(2)]; tv3 = V.alloc()
    for c in range(2):
        a(f"""
        v_lshrrev_b32 v{tv}, 5, v0
        v_lshlrev_b32 v{tv}, 2, v{tv}
        v_bfe_u32 v{tv2}, v0, 2, 2
        v_add_u32 v{tv}, v{tv}, v{tv2}
        v_lshlrev_b32 v{tv}, 7, v{tv}
        v_bfe_u32 v{tv2}, v0, 4, 1
        v_lshlrev_b32 v{tv2}, 1, v{tv2}
        v_bfe_u32 v{tv3}, v0, 1, 1
        v_add_u32 v{tv2}, v{tv2}, v{tv3}
        v_add_u32 v{tv2}, {4*c}, v{tv2}
        v_bfe_u32 v{tv3}, v0, 3, 1
        v_lshlrev_b32 v{tv3}, 2, v{tv3}
        v_xor_b32 v{tv2}, v{tv2}, v{tv3}
        v_lshlrev_b32 v{tv2}, 4, v{tv2}
        v_add_u32 v{tv}, v{tv}, v{tv2}
        v_and_b32 v{tv2}, 1, v0
        v_lshlrev_b32 v{tv2}, 3, v{tv2}
        v_add_u32 v{v_w[c]}, v{tv}, v{tv2}
        """)
    for c in range(2):
        for i in range(16): a(f"v_mov_b32 v{acc[c]+i}, 0")
    def reads(g, j, b):
        L = []
        off = ((128*g + 16*j) * 128) % 65536
        for c in range(2):
            for u in range(2):
                L.append(f"ds_read_b64_tr_b16 {vr(wf[b][c]+2*u,2)}, v{v_w[c]} offset:{off+u*1024}")
        return L
    NG = 8
    outstanding_x = 4
    for g in range(NG):
        last_issued = min(g+npre-1, NG-1)
        after = (last_issued - g) * 12 + (4 if g == 0 else 0)
        a(f"s_waitcnt vmcnt({after})\ns_barrier")
        if g == 4:
            for c in range(2): a(f"v_add_u32 v{v_w[c]}, 0x10000, v{v_w[c]}")
        nxt = issue(g+npre) if g+npre < NG else []
        for r in reads(g, 0, 0): a(r)
        for j in range(8):
            b = j & 1
            rn = reads(g, j+1, b ^ 1) if j < 7 else []
            B = vr(of[g % NSLOT] + 4*j, 4)
            a(f"s_waitcnt lgkmcnt(2)" if True else "")
            a(f"v_mfma_f32_32x32x16_bf16 {vr(acc[0],16)}, {vr(wf[b][0],4)}, {B}, {vr(acc[0],16)}")
            for r in rn[:2]: a(r)
            a(f"s_waitcnt lgkmcnt({2 if rn else 0})")
            a(f"v_mfma_f32_32x32x16_bf16 {vr(acc[1],16)}, {vr(wf[b][1],4)}, {B}, {vr(acc[1],16)}")
            for r in rn[2:]: a(r)
            k = (len(nxt) + (7-j)) // (8-j) if nxt else 0
            for _ in range(k): a(nxt.pop(0))
    xn = V.alloc(32, 4); t = V.alloc(); vsum = V.alloc(); vsq = V.alloc()
    for c in range(2):
        for i in range(8):
            src = xo + 8*c + i
            r0 = acc[c] + 2*i
            a(f"v_lshlrev_b32 v{xn+16*c+2*i}, 16, v{src}\nv_and_b32 v{xn+16*c+2*i+1}, 0xffff0000, v{src}")
    for c in range(2):
        for i in range(16):
            a(f"v_add_f32 v{xn+16*c+i}, v{xn+16*c+i}, v{acc[c]+i}")
    pk = acc[0]
    if not final:
        a(f"v_mov_b32 v{vsum}, v{xn}\nv_mul_f32 v{vsq}, v{xn}, v{xn}")
        for i in range(1, 32):
            a(f"v_add_f32 v{vsum}, v{vsum}, v{xn+i}\nv_fmac_f32 v{vsq}, v{xn+i}, v{xn+i}")
    for i in range(16):
        a(f"v_cvt_pk_bf16_f32 v{pk+i}, v{xn+2*i}, v{xn+2*i+1}")
    if not final:
        for j in range(4):
            a(f"buffer_store_dwordx4 {vr(pk+4*j,4)}, v{v_l16}, {srd(rX)}, s{s_xsrc} offen offset:{j*1024}")
        halfsum(a, vsum, t); halfsum(a, vsq, t)
        pr = V.alloc(2)
        a(f"""
        v_mov_b32 v{pr}, v{vsum}
        v_mov_b32 v{pr+1}, v{vsq}
        s_lshl_b32 s{t0}, s{s_nt}, 14
        s_lshl_b32 s{t1}, s{s_mt}, 10
        s_add_u32 s{t0}, s{t0}, s{t1}
        s_lshl_b32 s{t1}, s{s_w}, 8
        s_add_u32 s{t0}, s{t0}, s{t1}
        v_lshlrev_b32 v{t}, 3, v0
        s_mov_b64 exec, 0xffffffff
        buffer_store_dwordx2 {vr(pr,2)}, v{t}, {srd(rS)}, s{t0} offen
        """)
    else:
        for c in range(2):
            for gp in range(2):
                r = pk + 8*c + 4*gp
                a(f"v_permlane32_swap_b32 v{r}, v{r+2}\nv_permlane32_swap_b32 v{r+1}, v{r+3}")
        a(f"""
        v_and_b32 v{t}, 31, v0
        v_lshlrev_b32 v{t}, 11, v{t}
        v_lshrrev_b32 v{tv}, 5, v0
        v_lshlrev_b32 v{tv}, 4, v{tv}
        v_add_u32 v{t}, v{t}, v{tv}
        s_lshl_b32 s{t0}, s{s_mt}, 2
        s_add_u32 s{t0}, s{t0}, s{s_w}
        s_lshl_b32 s{t0}, s{t0}, 16
        s_lshl_b32 s{t1}, s{s_nt}, 7
        s_add_u32 s{t0}, s{t0}, s{t1}
        """)
        for c in range(2):
            for gp in range(2):
                r = pk + 8*c + 4*gp
                a(f"buffer_store_dwordx4 {vr(r,4)}, v{t}, {srd(rS)}, s{t0} offen offset:{c*64+gp*32}")
    a.label(f"L_{name}_end")
    a("s_endpgm")
    return kernel_text(name, a, V.high+1)
```

```python
from common import *

LDS_PREP = 8192
NWG_PREP = 256 + 96

def gen_prep(name):
    a = Asm(); V = Regs(1, 255); S = Regs(4, 99)
    s_x = S.alloc(2); s_wa = S.alloc(2); s_wb = S.alloc(2); s_ws = S.alloc(2)
    load_ptr(a, s_x, KA_AX); load_ptr(a, s_wa, KA_AWQKV); load_ptr(a, s_wb, KA_BWQKV); load_ptr(a, s_ws, KA_WS)
    a(f"s_cmp_ge_u32 s2, {NWG_PREP}\ns_cbranch_scc1 L_{name}_end")
    s_w = S.alloc(); t0 = S.alloc(); t1 = S.alloc()
    tid = V.alloc()
    a(f"""
    v_mov_b32 v{tid}, v0
    v_lshrrev_b32 v2, 6, v0
    v_and_b32 v0, 63, v0
    s_nop 0
    v_readfirstlane_b32 s{s_w}, v2
    s_waitcnt lgkmcnt(0)
    s_cmp_ge_u32 s2, 96
    s_cbranch_scc0 L_{name}_cs
    """)
    rX = S.alloc(4); rF = S.alloc(4); rS = S.alloc(4); rG = S.alloc(4)
    make_srd(a, rX, s_x, 2048*1024*2)
    make_srd(a, rF, s_ws, SZ_XF, WS_XF)
    make_srd(a, rS, s_ws, SZ_ST, WS_ST)
    make_srd(a, rG, s_ws, SZ_FLAG, WS_FLAG)
    s_id = S.alloc(); s_T = S.alloc(); s_nt = S.alloc()
    ad = V.alloc(); t = V.alloc(); l16 = V.alloc()
    fr = V.alloc(16, 4); z = V.alloc(4)
    a(f"""
    s_sub_u32 s{s_id}, s2, 96
    s_lshr_b32 s{s_T}, s{s_id}, 4
    s_lshl_b32 s{s_T}, s{s_T}, 2
    s_add_u32 s{s_T}, s{s_T}, s{s_w}
    s_and_b32 s{s_nt}, s{s_id}, 15
    v_and_b32 v{ad}, 31, v0
    v_lshlrev_b32 v{ad}, 11, v{ad}
    v_lshrrev_b32 v{t}, 5, v0
    v_lshlrev_b32 v{t}, 3, v{t}
    v_add_u32 v{ad}, v{ad}, v{t}
    s_lshl_b32 s{t0}, s{s_T}, 16
    s_lshl_b32 s{t1}, s{s_nt}, 7
    s_add_u32 s{t0}, s{t0}, s{t1}
    v_lshlrev_b32 v{l16}, 4, v0
    """)
    for i in range(4):
        for u in range(2):
            a(f"buffer_load_dwordx2 {vr(fr+4*i+2*u,2)}, v{ad}, {srd(rX)}, s{t0} offen offset:{32*i+16*u}")
    a(f"""
    s_cmp_lg_u32 s{s_id}, 0
    s_cbranch_scc1 L_{name}_noflag
    v_mov_b32 v{z}, 0
    v_mov_b32 v{z+1}, 0
    v_mov_b32 v{z+2}, 0
    v_mov_b32 v{z+3}, 0
    v_lshlrev_b32 v{t}, 4, v{tid}
    buffer_store_dwordx4 {vr(z,4)}, v{t}, {srd(rG)}, 0 offen
    buffer_store_dwordx4 {vr(z,4)}, v{t}, {srd(rG)}, 0 offen offset:4080
    """)
    a.L.pop()
    a(f"s_movk_i32 s{t1}, 4096\nbuffer_store_dwordx4 {vr(z,4)}, v{t}, {srd(rG)}, s{t1} offen")
    a.label(f"L_{name}_noflag")
    a(f"""
    s_lshl_b32 s{t0}, s{s_T}, 16
    s_lshl_b32 s{t1}, s{s_nt}, 12
    s_add_u32 s{t0}, s{t0}, s{t1}
    s_waitcnt vmcnt(0)
    """)
    for i in range(4):
        a(f"buffer_store_dwordx4 {vr(fr+4*i,4)}, v{l16}, {srd(rF)}, s{t0} offen offset:{i*1024}")
    lo = V.alloc(); hi = V.alloc(); vs = V.alloc(); vq = V.alloc(); pr = V.alloc(2)
    a(f"v_mov_b32 v{vs}, 0\nv_mov_b32 v{vq}, 0")
    for i in range(16):
        a(f"""v_lshlrev_b32 v{lo}, 16, v{fr+i}
        v_and_b32 v{hi}, 0xffff0000, v{fr+i}
        v_add_f32 v{vs}, v{vs}, v{lo}
        v_fmac_f32 v{vq}, v{lo}, v{lo}
        v_add_f32 v{vs}, v{vs}, v{hi}
        v_fmac_f32 v{vq}, v{hi}, v{hi}""")
    halfsum(a, vs, t); halfsum(a, vq, t)
    a(f"""
    v_mov_b32 v{pr}, v{vs}
    v_mov_b32 v{pr+1}, v{vq}
    s_lshl_b32 s{t0}, s{s_nt}, 14
    s_lshl_b32 s{t1}, s{s_T}, 8
    s_add_u32 s{t0}, s{t0}, s{t1}
    v_lshlrev_b32 v{t}, 3, v0
    s_mov_b64 exec, 0xffffffff
    buffer_store_dwordx2 {vr(pr,2)}, v{t}, {srd(rS)}, s{t0} offen
    s_endpgm
    """)
    a.label(f"L_{name}_cs")
    V = Regs(3, 255)
    tid = 1
    rW = S.alloc(4); rC = S.alloc(4); s_cg = S.alloc(); s_m = S.alloc()
    a(f"""
    s_cmp_ge_u32 s2, 48
    s_cselect_b32 s{s_m}, 1, 0
    s_cselect_b32 s{rW}, s{s_wb}, s{s_wa}
    s_cselect_b32 s{rW+1}, s{s_wb+1}, s{s_wa+1}
    s_mov_b32 s{rW+2}, {1024*3072*2}
    s_mov_b32 s{rW+3}, 0x20000
    s_mul_i32 s{t0}, s{s_m}, 48
    s_sub_u32 s{s_cg}, s2, s{t0}
    """)
    make_srd(a, rC, s_ws, SZ_CS, WS_CS)
    ad = V.alloc(); t = V.alloc(); ld = V.alloc(128, 4); sm = V.alloc(8, 4); lo = V.alloc(); hi = V.alloc()
    a(f"""
    v_lshrrev_b32 v{ad}, 3, v{tid}
    v_mul_u32_u24 v{ad}, 6144, v{ad}
    v_and_b32 v{t}, 7, v{tid}
    v_lshlrev_b32 v{t}, 4, v{t}
    v_add_u32 v{ad}, v{ad}, v{t}
    s_lshl_b32 s{t0}, s{s_cg}, 7
    """)
    for i in range(32):
        a(f"buffer_load_dwordx4 {vr(ld+4*i,4)}, v{ad}, {srd(rW)}, s{t0} offen")
        if i < 31: a(f"s_add_u32 s{t0}, s{t0}, {32*6144}")
    for i in range(8): a(f"v_mov_b32 v{sm+i}, 0")
    for i in range(32):
        a(f"s_waitcnt vmcnt({31-i})")
        for d in range(4):
            r = ld + 4*i + d
            a(f"""v_lshlrev_b32 v{lo}, 16, v{r}
            v_and_b32 v{hi}, 0xffff0000, v{r}
            v_add_f32 v{sm+2*d}, v{sm+2*d}, v{lo}
            v_add_f32 v{sm+2*d+1}, v{sm+2*d+1}, v{hi}""")
    a(f"""
    v_lshrrev_b32 v{ad}, 3, v{tid}
    v_lshlrev_b32 v{ad}, 8, v{ad}
    v_and_b32 v{t}, 7, v{tid}
    v_lshlrev_b32 v{t}, 5, v{t}
    v_add_u32 v{ad}, v{ad}, v{t}
    ds_write_b128 v{ad}, {vr(sm,4)}
    ds_write_b128 v{ad}, {vr(sm+4,4)} offset:16
    s_waitcnt lgkmcnt(0)
    s_barrier
    s_cmp_lg_u32 s{s_w}, 0
    s_cbranch_scc1 L_{name}_end
    v_lshlrev_b32 v{ad}, 2, v0
    """)
    for i in range(32):
        a(f"ds_read_b32 v{ld+i}, v{ad} offset:{i*256}")
        if i % 8 == 7: a("s_waitcnt lgkmcnt(4)")
    a("s_waitcnt lgkmcnt(0)")
    for i in range(1, 32): a(f"v_add_f32 v{ld}, v{ld}, v{ld+i}")
    a(f"""
    s_mul_i32 s{t0}, s{s_m}, {3072*4}
    s_lshl_b32 s{t1}, s{s_cg}, 8
    s_add_u32 s{t0}, s{t0}, s{t1}
    buffer_store_dword v{ld}, v{ad}, {srd(rC)}, s{t0} offen
    """)
    a.label(f"L_{name}_end")
    a("s_endpgm")
    return kernel_text(name, a, 144)
```

```python
import sys, os
sys.path.insert(0, os.path.dirname(os.path.abspath(__file__)))
from common import *
import kp, kprep, kf, kfa, kfb

HEADER = """; Kernarg layout (80 bytes, pointers only): A_x, A_wqkv, A_w_phi, A_wo, B_x, B_wqkv, B_wo, d_out, d_debug, d_ws
"""

def build(upto=None):
    launches = [
        ("prep_kernel", kprep.NWG_PREP, 256, kprep.LDS_PREP),
        ("fa1_kernel", 256, 512, kf.LDS_FA),
        ("pa1_kernel", 256, 256, kp.LDS_P),
        ("fb1_kernel", 256, 512, kf.LDS_FB),
        ("pb1_kernel", 256, 256, kp.LDS_P),
        ("fa2_kernel", 256, 512, kf.LDS_FA),
        ("pa1_kernel", 256, 256, kp.LDS_P),
        ("fb2_kernel", 256, 512, kf.LDS_FB),
        ("pb2_kernel", 256, 256, kp.LDS_P),
    ]
    if upto is not None: launches = launches[:upto]
    txt = HEADER
    for (n, g, b, l) in launches:
        txt += f"; @launch kernel={n} grid=({g},1,1) block=({b},1,1) lds={l}\n"
    txt += '.amdgcn_target "amdgcn-amd-amdhsa--gfx950"\n'
    gens = {
        "prep_kernel": lambda: kprep.gen_prep("prep_kernel"),
        "fa1_kernel": lambda: kfa.gen_fa("fa1_kernel", 0),
        "pa1_kernel": lambda: kp.gen_p("pa1_kernel", KA_AWO, False),
        "fb1_kernel": lambda: kfb.gen_fb("fb1_kernel", 1),
        "pb1_kernel": lambda: kp.gen_p("pb1_kernel", KA_BWO, False),
        "fa2_kernel": lambda: kfa.gen_fa("fa2_kernel", 2),
        "fb2_kernel": lambda: kfb.gen_fb("fb2_kernel", 3),
        "pb2_kernel": lambda: kp.gen_p("pb2_kernel", KA_BWO, True),
    }
    done = set()
    for (n, g, b, l) in launches:
        if n not in done:
            done.add(n)
            txt += gens[n]()
    return txt

if __name__ == "__main__":
    out = sys.argv[1] if len(sys.argv) > 1 else "interleave_layers__linear_kernel_hedgehog__mha_block__prompt.s"
    t = build()
    open(out, "w").write(t)
    print("wrote", out, len(t), "bytes", len(t.splitlines()), "lines")
```
